```python
import torch

def _softmax(x, axis=-1):
    return torch.softmax(x, dim=axis)
def _gelu(x):
    return torch.nn.functional.gelu(x, approximate="tanh")
def _silu(x):
    return torch.nn.functional.silu(x)
def _sigmoid(x):
    return torch.sigmoid(x)
def _layernorm(x, axis=-1, eps=1e-5):
    m = x.mean(dim=axis, keepdim=True)
    v = x.var(dim=axis, keepdim=True, unbiased=False)
    return (x - m) / torch.sqrt(v + eps)
def _scatter_add(tgt, idx, src, axis=0):
    return tgt.clone().index_add_(axis, idx, src)
def _segment_sum(src, seg, n):
    out = torch.zeros((n,) + src.shape[1:], dtype=src.dtype)
    return out.index_add_(0, seg, src)
def _pad(x, pw):
    flat = tuple(v for pair in reversed(pw) for v in pair)
    return torch.nn.functional.pad(x, flat)

kernel_name = 'concat_heads__ssm_conv_h3__grouped_kv_mqa__prompt'

def setup_inputs():

    _w = (lambda a: (lambda t: t.to(torch.bfloat16) if t.is_floating_point() else t)(torch.as_tensor(a)))
    def _A_setup():
        B, S, D = 1, 2048, 640
        ks = 4
        return {
            "q": _w((lambda *s: torch.randn(*s, dtype=torch.bfloat16) * 0.05)(B, S, D)),
            "k": _w((lambda *s: torch.randn(*s, dtype=torch.bfloat16) * 0.4)(B, S, D)),
            "v": _w((lambda *s: torch.randn(*s, dtype=torch.bfloat16) * 0.2)(B, S, D)),
            "shift_k": _w((lambda *s: torch.randn(*s, dtype=torch.bfloat16) * 0.4)(D, ks) * 0.5),
            "ssm_k": _w((lambda *s: torch.randn(*s, dtype=torch.bfloat16) * 0.4)(D, S) * (1.0 / S ** 0.5)),
            "ssm_D": _w((lambda *s: torch.randn(*s, dtype=torch.bfloat16) * 0.2)(D)),
        }
    _A_in = _A_setup()

    def _B_setup():
        B, S, D, H = 1, 2048, 640, 32
        Dh = D // H
        return {
            "x": _w((lambda *s: torch.randn(*s, dtype=torch.bfloat16) * 0.05)(B, S, D)),
            "wq": _w((lambda *s: torch.randn(*s, dtype=torch.bfloat16) * 0.8)(D, H * Dh)),
            "wk": _w((lambda *s: torch.randn(*s, dtype=torch.bfloat16) * 0.8)(D, Dh)),
            "wv": _w((lambda *s: torch.randn(*s, dtype=torch.bfloat16) * 0.05)(D, Dh)),
            "wo": _w((lambda *s: torch.randn(*s, dtype=torch.bfloat16) * 0.05)(H * Dh, D)),
        }
    _B_in = _B_setup()

    return {
        "A_q": _A_in["q"],
        "A_k": _A_in["k"],
        "A_v": _A_in["v"],
        "A_shift_k": _A_in["shift_k"],
        "A_ssm_k": _A_in["ssm_k"],
        "A_ssm_D": _A_in["ssm_D"],
        "B_x": _B_in["x"],
        "B_wq": _B_in["wq"],
        "B_wk": _B_in["wk"],
        "B_wv": _B_in["wv"],
        "B_wo": _B_in["wo"],
    }

def reference(A_q, A_k, A_v, A_shift_k, A_ssm_k, A_ssm_D, B_x, B_wq, B_wk, B_wv, B_wo):
    def _A_ref(q, k, v, shift_k, ssm_k, ssm_D):
        B, S, D = q.shape
        ks = shift_k.shape[-1]
        k_pad = _pad(k, ((0, 0), (ks - 1, 0), (0, 0)))
        k_shift = torch.zeros_like(k)
        for t in range(ks):
            k_shift = k_shift + k_pad[:, t:t + S, :] * shift_k[:, ks - 1 - t][None, None, :]
        kv = k_shift * v
        L = 2 * S
        kv_pad = _pad(kv, ((0, 0), (0, S), (0, 0)))
        kf_pad = _pad(ssm_k, ((0, 0), (0, S)))
        kv_f = (lambda x, axes=(-2,-1): torch.fft.rfft2(x.float(), dim=axes))(kv_pad[:, None, :, :], axes=(1, 2))
        kf_f = (lambda x, axes=(-2,-1): torch.fft.rfft2(x.float(), dim=axes))(kf_pad[:, None, :], axes=(1, 2))
        kf_f = (lambda x, *d: x.permute(*d))(kf_f, 1, 2, 0)
        y_f = kv_f * kf_f[None, :, :, :]
        y = (lambda x, s, axes=(-2,-1): torch.fft.irfft2(x, s=s, dim=axes).to(torch.bfloat16))(y_f, (1, L), axes=(1, 2))[:, 0, :S, :]
        y = y + kv * ssm_D[None, None, :]
        return q * y

    def _B_ref(x, wq, wk, wv, wo):
        B, S, D = x.shape
        H = 32
        Dh = D // H
        q = (lambda x, *d: x.permute(*d))((x @ wq).reshape(B, S, H, Dh), 0, 2, 1, 3)
        k = x @ wk
        v = x @ wv
        scores = torch.einsum("bhqd,bkd->bhqk", q, k) * (Dh ** -0.5)
        p = _softmax(scores, axis=-1)
        o = torch.einsum("bhqk,bkd->bhqd", p, v)
        return (lambda x, *d: x.permute(*d))(o, 0, 2, 1, 3).reshape(B, S, H * Dh) @ wo

    a = _A_ref(A_q, A_k, A_v, A_shift_k, A_ssm_k, A_ssm_D)
    b = _B_ref(B_x, B_wq, B_wk, B_wv, B_wo)
    return torch.concatenate([a, b], axis=-1)
```

```python
NAME = "concat_heads__ssm_conv_h3__grouped_kv_mqa__prompt"
S, D, H, DH = 2048, 640, 32, 20

WS_Q = 0
WS_KF1 = WS_Q + S * D * 2
WS_KF2 = WS_KF1 + 64 * 1024
WS_VF = WS_KF2 + 16 * 1024
WS_UR = WS_VF + 64 * 4 * 320
WS_WO = WS_UR + S * D * 2
WS_Y = WS_WO + D * D * 2
WS_FL = WS_Y + S * D * 2
WS_END = WS_FL + 8 * 1024

class Asm:
    def __init__(self):
        self.lines = []
    def __call__(self, s):
        for l in s.strip("\n").split("\n"):
            l = l.rstrip()
            if l.strip() == "":
                continue
            if l.strip().endswith(":") or l.startswith("."):
                self.lines.append(l.strip())
            else:
                self.lines.append("    " + l.strip())
    def label(self, n):
        self.lines.append(n + ":")
    def text(self):
        return "\n".join(self.lines) + "\n"

def vr(b, n):
    return f"v[{b}:{b+n-1}]" if n > 1 else f"v{b}"
def sr(b, n):
    return f"s[{b}:{b+n-1}]" if n > 1 else f"s{b}"

def srd(a, dst, base, nbytes):
    a(f"s_mov_b32 s{dst}, s{base}")
    a(f"s_and_b32 s{dst+1}, s{base+1}, 0xffff")
    a(f"s_mov_b32 s{dst+2}, {nbytes}")
    a(f"s_mov_b32 s{dst+3}, 0x20000")

def descriptor(name, vgpr, sgpr):
    acc = (vgpr + 3) // 4 * 4
    return f""".section .rodata,"a"
.p2align 6
.amdhsa_kernel {name}
  .amdhsa_next_free_vgpr {vgpr}
  .amdhsa_next_free_sgpr {sgpr}
  .amdhsa_accum_offset {acc}
  .amdhsa_group_segment_fixed_size 0
  .amdhsa_kernarg_size 112
  .amdhsa_user_sgpr_count 2
  .amdhsa_user_sgpr_kernarg_segment_ptr 1
  .amdhsa_system_sgpr_workgroup_id_x 1
.end_amdhsa_kernel
"""

import os
STAMPS = os.environ.get("STAMPS", "0") == "1"
WS_DBG = 12 << 20
STAMP_BASE = 64
def stamp(a, n):
    if STAMPS:
        a(f"s_memrealtime s[{STAMP_BASE+2*n}:{STAMP_BASE+2*n+1}]") if n == 0 else a(f"s_memtime s[{STAMP_BASE+2*n}:{STAMP_BASE+2*n+1}]")
def stamp_flush(a, nst, wsptr, wave_s, kidx, tmpv=1):
    if not STAMPS:
        return
    a("s_mov_b64 exec, -1")
    a(f"s_memrealtime s[{STAMP_BASE+2*nst}:{STAMP_BASE+2*nst+1}]")
    a("s_waitcnt lgkmcnt(0)")
    a(f"s_lshl_b32 s98, s2, 4")
    a(f"s_add_u32 s98, s98, s{wave_s}")
    a(f"s_lshl_b32 s98, s98, 7")
    a(f"s_add_u32 s98, s98, {WS_DBG + kidx * (1 << 20)}")
    a(f"v_mov_b32 v{tmpv}, s98")
    for i in range(nst + 1):
        a(f"v_mov_b32 v{tmpv+1}, s{STAMP_BASE+2*i}")
        a(f"global_store_dword v{tmpv}, v{tmpv+1}, s[{wsptr}:{wsptr+1}] offset:{4*i}")
```

```python
import sys, os, subprocess
from common import *
AMP = 4
def make(src, out, ka, wa, ia, kb, wb, ib, amin=True, bmax=True):
    s = open(src).read()
    lines = s.split("\n")
    i = max(k for k, l in enumerate(lines) if "@launch" in l)
    lines = lines[:i+1] + ["; @launch kernel=diag_kernel grid=(1,1,1) block=(256,1,1) lds=64"] + lines[i+1:]
    t = "\n".join(lines)
    offa = WS_DBG + ka * (1 << 20) + wa * 128 + ia * 4
    offb = WS_DBG + kb * (1 << 20) + wb * 128 + ib * 4
    code = f"""
.globl diag_kernel
.p2align 8
.type diag_kernel,@function
diag_kernel:
    s_cmp_ge_u32 s2, 1
    s_cbranch_scc1 DG_END
    s_load_dwordx2 s[4:5], s[0:1], 104
    v_lshlrev_b32 v1, 11, v0
    v_add_u32 v2, {offa}, v1
    v_add_u32 v3, {offb}, v1
    v_mov_b32 v6, 0
    v_mov_b32 v7, {-1 if amin else 0}
    v_mov_b32 v8, {0 if bmax else -1}
    ds_write_b32 v6, v7
    ds_write_b32 v6, v8 offset:4
    s_waitcnt lgkmcnt(0)
    global_load_dword v4, v2, s[4:5]
    global_load_dword v5, v3, s[4:5]
    s_barrier
    s_waitcnt vmcnt(0)
    {'ds_min_u32' if amin else 'ds_max_u32'} v6, v4
    {'ds_max_u32' if bmax else 'ds_min_u32'} v6, v5 offset:4
    s_waitcnt lgkmcnt(0)
    s_barrier
    ds_read_b64 v[4:5], v6
    s_waitcnt lgkmcnt(0)
    v_sub_u32 v4, v5, v4
    s_nop 1
    v_readfirstlane_b32 s6, v4
    s_nop 3
    s_min_u32 s6, s6, 10000
    s_mul_i32 s6, s6, {AMP}
    s_memrealtime s[8:9]
    s_waitcnt lgkmcnt(0)
DG_L:
    s_memrealtime s[10:11]
    s_waitcnt lgkmcnt(0)
    s_sub_u32 s12, s10, s8
    s_cmp_lt_u32 s12, s6
    s_cbranch_scc1 DG_L
DG_END:
    s_endpgm
"""
    t = t.replace('.section .rodata,"a"', code + '.section .rodata,"a"', 1)
    t += descriptor("diag_kernel", 16, 32)
    open(out, "w").write(t)
src = "dbg.s"
make(src, "dg0.s", 0, 0, 0, 0, 0, 0, True, False)
make(src, "dg1.s", 0, 0, 0, 0, 0, 15)
make(src, "dg2.s", 0, 0, 0, 1, 0, 0, True, False)
make(src, "dg3.s", 1, 0, 0, 1, 8, 14)
```
